```python
import torch

def _softmax(x, axis=-1):
    return torch.softmax(x, dim=axis)
def _gelu(x):
    return torch.nn.functional.gelu(x, approximate="tanh")
def _silu(x):
    return torch.nn.functional.silu(x)
def _sigmoid(x):
    return torch.sigmoid(x)
def _layernorm(x, axis=-1, eps=1e-5):
    m = x.mean(dim=axis, keepdim=True)
    v = x.var(dim=axis, keepdim=True, unbiased=False)
    return (x - m) / torch.sqrt(v + eps)
def _scatter_add(tgt, idx, src, axis=0):
    return tgt.clone().index_add_(axis, idx, src)
def _segment_sum(src, seg, n):
    out = torch.zeros((n,) + src.shape[1:], dtype=src.dtype)
    return out.index_add_(0, seg, src)
def _pad(x, pw):
    flat = tuple(v for pair in reversed(pw) for v in pair)
    return torch.nn.functional.pad(x, flat)

kernel_name = 'standalone__sliding_block_cached__sampling'

def setup_inputs():

    _w = (lambda a: (lambda t: t.to(torch.bfloat16) if t.is_floating_point() else t)(torch.as_tensor(a)))
    B, Sq, D = 32, 32, 512
    Hq, Hkv, Sk, Dh = 32, 8, 2048, 128
    assert Hq % Hkv == 0, (Hq, Hkv)
    return {
        "x": _w((lambda *s: torch.randn(*s, dtype=torch.bfloat16) * 0.8)(B, Sq, D)),
        "k_cache": _w((lambda *s: torch.randn(*s, dtype=torch.bfloat16) * 0.8)(B, Hkv, Sk, Dh)),
        "v_cache": _w((lambda *s: torch.randn(*s, dtype=torch.bfloat16) * 0.05)(B, Hkv, Sk, Dh)),
        "wq": _w((lambda *s: torch.randn(*s, dtype=torch.bfloat16) * 0.8)(D, Hq * Dh) * (D ** -0.5)),
        "wo": _w((lambda *s: torch.randn(*s, dtype=torch.bfloat16) * 0.05)(Hq * Dh, D) * ((Hq * Dh) ** -0.5)),
    }

def reference(x, k_cache, v_cache, wq, wo):
    B, Sq, D = x.shape
    Hq, Dh = 32, 128
    Hkv, Sk = k_cache.shape[1], k_cache.shape[2]
    W = min(4096, max(256, Sk // 4))
    rep = Hq // Hkv
    q = (lambda x, *d: x.permute(*d))((x @ wq).reshape(B, Sq, Hq, Dh), 0, 2, 1, 3)
    k = (lambda x, n, axis: torch.repeat_interleave(x, n, dim=axis))(k_cache[:, :, Sk - W:, :], rep, axis=1)
    v = (lambda x, n, axis: torch.repeat_interleave(x, n, dim=axis))(v_cache[:, :, Sk - W:, :], rep, axis=1)
    scores = torch.einsum("bhqd,bhkd->bhqk", q, k) * (Dh ** -0.5)
    p = _softmax(scores, axis=-1)
    o = torch.einsum("bhqk,bhkd->bhqd", p, v)
    return (lambda x, *d: x.permute(*d))(o, 0, 2, 1, 3).reshape(B, Sq, Hq * Dh) @ wo
```

```python
import re

def v(i, n=1):
    return f"v{i}" if n == 1 else f"v[{i}:{i+n-1}]"
def s(i, n=1):
    return f"s{i}" if n == 1 else f"s[{i}:{i+n-1}]"

_reg_re = re.compile(r'^(v|s|a)(\d+)$|^(v|s|a)\[(\d+):(\d+)\]$')
def regs_of(tok):
    tok = tok.strip()
    m = _reg_re.match(tok)
    if not m:
        if tok in ('vcc', 'exec', 'm0', 'scc'):
            return {tok}
        if tok in ('vcc_lo', 'vcc_hi'): return {'vcc'}
        if tok in ('exec_lo', 'exec_hi'): return {'exec'}
        t2 = tok.lstrip('-')
        if t2.startswith('abs(') and t2.endswith(')'):
            return regs_of(t2[4:-1])
        if t2 != tok:
            return regs_of(t2)
        return set()
    if m.group(1):
        return {m.group(1) + m.group(2)}
    return {m.group(3) + str(i) for i in range(int(m.group(4)), int(m.group(5)) + 1)}

TRANS = ('v_exp_f32', 'v_log_f32', 'v_rcp_f32', 'v_rsq_f32', 'v_sqrt_f32', 'v_sin_f32', 'v_cos_f32')

class Inst:
    def __init__(self, text):
        self.text = text
        t = text.split(';')[0].strip()
        self.is_label = t.endswith(':')
        self.op = ''
        self.dst = set(); self.src = set()
        self.kind = 'other'
        if self.is_label or not t or t.startswith('.'):
            self.kind = 'pseudo'; return
        parts = t.split(None, 1)
        self.op = parts[0]
        ops = []
        if len(parts) > 1:
            rest = parts[1]
            ops = [o.strip() for o in rest.split(',')]
            mods = ops[-1].split()
            ops[-1] = mods[0] if mods else ''
            self.mods = mods[1:]
        else:
            self.mods = []
        self.ops = ops
        op = self.op
        R = [regs_of(o) for o in ops]
        if op.startswith('v_mfma'):
            self.kind = 'mfma'
            self.dst = R[0]; self.A = R[1]; self.B = R[2]; self.C = R[3]
            self.src = R[1] | R[2] | R[3]
            self.passes = 8 if '32x32x16' in op else (4 if '16x16x32' in op else None)
            assert self.passes
        elif op.startswith('v_cmp'):
            self.kind = 'valu'; self.dst = R[0]; self.src = set().union(*R[1:])
        elif op.startswith('v_readfirstlane') or op.startswith('v_readlane'):
            self.kind = 'valu'; self.dst = R[0]; self.src = set().union(*R[1:])
        elif op.startswith('v_permlane') and 'swap' in op:
            self.kind = 'valu'; self.dst = R[0] | R[1]; self.src = R[0] | R[1]
        elif op.startswith('v_'):
            self.kind = 'valu'
            self.dst = R[0]; self.src = set().union(*R[1:]) if len(R) > 1 else set()
            if op.startswith('v_fmac') or op.startswith('v_dot2c') or op.startswith('v_writelane'):
                self.src |= R[0]
            if op.startswith('v_cndmask') and len(ops) == 3: self.src |= {'vcc'}
            if '_co_' in op:
                self.dst = R[0] | R[1]; self.src = set().union(*R[2:])
        elif op.startswith('ds_read') or op.startswith('ds_bpermute') or op.startswith('ds_swizzle'):
            self.kind = 'ds'; self.dst = R[0]; self.src = set().union(*R[1:])
        elif op.startswith('ds_'):
            self.kind = 'ds'; self.src = set().union(*R)
        elif op.startswith('buffer_load') or op.startswith('global_load'):
            self.kind = 'vmem'
            if 'lds' in self.mods or '_lds_' in op:
                self.src = set().union(*R) | {'m0'}; self.ldsdma = True
            else:
                self.dst = R[0]; self.src = set().union(*R[1:])
        elif op.startswith('buffer_store') or op.startswith('global_store') :
            self.kind = 'vmem'; self.src = set().union(*R); self.store = True
            self.data = R[0] if op.startswith('buffer') else R[1]
        elif op.startswith('buffer_atomic') or op.startswith('global_atomic'):
            self.kind = 'vmem'; self.src = set().union(*R)
            if 'sc0' in self.mods: self.dst = R[0]
        elif op.startswith('s_nop'):
            self.kind = 'nop'; self.n = int(ops[0], 0) + 1
        elif op.startswith('s_load') or op.startswith('s_memtime') or op.startswith('s_memrealtime'):
            self.kind = 'smem'; self.dst = R[0]; self.src = set().union(*R[1:]) if len(R) > 1 else set()
        elif op.startswith('s_cbranch') or op.startswith('s_branch') or op in ('s_barrier', 's_endpgm', 's_waitcnt', 's_sleep', 's_setprio', 's_setpc_b64'):
            self.kind = 'sctl'
            if op == 's_setpc_b64': self.src = R[0]
        elif op.startswith('s_cmp') or op.startswith('s_bitcmp'):
            self.kind = 'salu'; self.src = set().union(*R); self.dst = {'scc'}
        elif op.startswith('s_'):
            self.kind = 'salu'; self.dst = R[0]; self.src = set().union(*R[1:]) if len(R) > 1 else set()
        else:
            raise ValueError("unknown instruction: " + text)

    def states(self):
        if self.kind == 'pseudo': return 0
        if self.kind == 'nop': return self.n
        return 1

def isv(r): return r[0] == 'v' and r != 'vcc'
def iss(r): return (r[0] == 's' and r != 'scc') or r == 'vcc'

def check_hazards(lines, window=24):
    ins = [Inst(l) for l in lines]
    ins = [i for i in ins if i.kind != 'pseudo']
    probs = []
    for k, c in enumerate(ins):
        dist = 0
        for p in reversed(ins[max(0, k - window):k]):
            need = 0; why = ''
            def req(n, w):
                nonlocal need, why
                if n > need: need, why = n, w
            if p.kind == 'valu':
                pv = {r for r in p.dst if isv(r)}
                ps = {r for r in p.dst if iss(r)}
                if c.kind == 'mfma' and pv & c.src: req(2, 'VALU->MFMA operand')
                if c.kind == 'valu' and c.op.startswith('v_permlane') and pv & c.src: req(2, 'VALU->permlane')
                if c.kind == 'valu' and (c.op.startswith('v_readfirstlane') or c.op.startswith('v_readlane')) and pv & c.src: req(1, 'VALU->readlane')
                if c.kind == 'valu' and 'dpp' in c.text and pv & c.src: req(2, 'VALU->DPP')
                if p.op.replace('_e32','').replace('_e64','') in TRANS and c.kind in ('valu',) and pv & c.src and c.op.replace('_e32','') not in TRANS: req(1, 'trans->VALU')
                if p.op.replace('_e32','').replace('_e64','') in TRANS and c.kind in ('valu',) and pv & c.src: req(1, 'trans->VALU(any)')
                if c.kind == 'valu' and ps & c.src: req(2, 'VALU sgpr write->VALU read')
                if c.kind == 'vmem' and ps & c.src: req(5, 'VALU sgpr write->VMEM read')
                if 'exec' in p.dst and c.kind == 'mfma': req(4, 'VALU exec->MFMA')
            if p.kind == 'salu' and 'm0' in p.dst and c.kind == 'vmem' and getattr(c, 'ldsdma', False): req(1, 'm0->LDS DMA')
            if p.kind == 'mfma':
                P = p.passes
                d = p.dst
                if c.kind == 'mfma':
                    if d & (c.A | c.B): req({4: 8, 8: 12}[P], 'MFMA D->MFMA A/B')
                    if d & c.C:
                        if not (c.C == d and c.passes == P): req({4: 6, 8: 10}[P], 'MFMA D->MFMA C overlap')
                    if (d & c.dst) and not (c.C == d and c.dst == d) and not (d & c.C): req({4: 8, 8: 12}[P], 'MFMA D->MFMA D WAW (conservative)')
                elif c.kind == 'valu':
                    if d & (c.src | c.dst): req({4: 8, 8: 12}[P], 'MFMA D->VALU')
                    if p.C & c.dst and not (d & c.dst): req({4: 3, 8: 7}[P], 'MFMA C read->VALU write WAR')
                elif c.kind in ('ds', 'vmem'):
                    if d & (c.src | c.dst): req({4: 8, 8: 12}[P], 'MFMA D->mem')
                    if p.C & c.dst: req({4: 3, 8: 7}[P], 'MFMA C read->load write WAR')
            if p.kind == 'vmem' and getattr(p, 'store', False) and ('x4' in p.op or 'x3' in p.op):
                if c.kind == 'valu' and p.data & c.dst: req(2, 'wide store data WAR')
                elif p.data & c.dst: req(1, 'wide store data WAR')
            if need > dist:
                probs.append(f"[{why}] need {need} have {dist}:\n    {p.text.strip()}\n    {c.text.strip()}")
            dist += p.states()
            if dist > 20: break
    return probs

class Asm:
    def __init__(self):
        self.lines = []
    def __call__(self, text):
        for l in text.split('\n'):
            l = l.strip()
            if l: self.lines.append(l)
    def label(self, name): self.lines.append(name + ':')
    def comment(self, t): self.lines.append('; ' + t)
    def text(self):
        out = []
        for l in self.lines:
            if l.endswith(':') or l.startswith('.') or l.startswith(';'):
                out.append(l)
            else:
                out.append('    ' + l)
        return '\n'.join(out) + '\n'
    def mark(self): return len(self.lines)
    def check(self, a=0, b=None, name='', twice=False):
        seg = [l for l in self.lines[a:b] if not l.startswith(';')]
        if twice: seg = seg + seg
        pr = check_hazards(seg)
        seen = set()
        for p in pr:
            if p not in seen:
                print(f"HAZARD {name}: {p}"); seen.add(p)
        return len(seen)
```

```python
import sys, math
from asmlib import *

NAME = "standalone__sliding_block_cached__sampling"
STAMPS = '--stamps' in sys.argv

XREG = 131072
OREG = 98304
CSCALE = math.log2(math.e) / math.sqrt(128.0)
import struct
def f2u(x): return struct.unpack('<I', struct.pack('<f', x))[0]
THRESH = 24.0

a = Asm()
nhaz = 0

S_X, S_K, S_V, S_WQ, S_WO, S_OUT, S_DBG, S_WS = 4, 6, 8, 10, 12, 14, 16, 18
S_W, S_HKV, S_B, S_J = 20, 21, 22, 23
SRD_A, SRD_K, SRD_V, SRD_WO, SRD_WS = 24, 28, 32, 36, 40
S_SELLO, S_SELHI = 44, 45
S_T0, S_IL, S_OFFL, S_IX, S_TX, S_BIG, S_IT = 46, 47, 48, 49, 50, 51, 52
S_TMP = 53
S_C, S_THR = 60, 61
S_RET = 62
S_CALL = 64
S_ST = 66

stamp_idx = {'A': 0, 'B': 0}
def stamp(side):
    if not STAMPS: return
    i = stamp_idx[side]; stamp_idx[side] += 1
    a(f"s_memrealtime {s(S_ST + 2*i, 2)}")

def stamps_flush(side, slot):
    if not STAMPS: return
    n = stamp_idx[side]
    a("s_waitcnt lgkmcnt(0)")
    a(f"s_lshl_b32 {s(S_TMP)}, s2, 11")
    a(f"s_lshl_b32 {s(S_TMP+1)}, {s(S_W)}, 8")
    a(f"s_add_u32 {s(S_TMP)}, {s(S_TMP)}, {s(S_TMP+1)}")
    a(f"s_add_u32 {s(S_TMP)}, {s(S_TMP)}, 0x1000000")
    a(f"s_add_u32 {s(S_TMP+2)}, {s(S_WS)}, {s(S_TMP)}")
    a(f"s_addc_u32 {s(S_TMP+3)}, {s(S_WS+1)}, 0")
    a("v_mov_b32 v0, 0")
    for i in range(n):
        a(f"v_mov_b32 v2, {s(S_ST+2*i)}")
        a(f"v_mov_b32 v3, {s(S_ST+2*i+1)}")
        a(f"global_store_dwordx2 v0, v[2:3], {s(S_TMP+2,2)} offset:{i*8}")
    a("s_waitcnt vmcnt(0)")

ACC, RAW, TMPF, XF = 16, 80, 208, 224
def acc(jp, u): return ACC + (jp * 2 + u) * 4
def raw(slot, j): return RAW + slot * 32 + j * 4

def load_step_salu(shift):
    a(f"s_add_u32 {s(S_OFFL)}, {s(S_T0)}, {s(S_IL)}")
    a(f"s_and_b32 {s(S_OFFL)}, {s(S_OFFL)}, 15")
    a(f"s_lshl_b32 {s(S_OFFL)}, {s(S_OFFL)}, {shift}")
    a(f"s_cmp_lt_u32 {s(S_IL)}, 16")
    a(f"s_cselect_b32 {s(S_OFFL)}, {s(S_OFFL)}, {s(S_BIG)}")
    a(f"s_add_u32 {s(S_IL)}, {s(S_IL)}, 1")

def loads_wq(slot):
    load_step_salu(18)
    for j in range(8):
        a(f"buffer_load_dwordx4 {v(raw(slot,j),4)}, {v(1+j)}, {s(SRD_A,4)}, {s(S_OFFL)} offen")

def loads_wo(slot):
    load_step_salu(15)
    for j in range(8):
        a(f"buffer_load_dwordx4 {v(raw(slot,j),4)}, {v(3+(j>>2))}, {s(SRD_WO,4)}, {s(S_OFFL)} offen offset:{(j&3)*1024}")

def xf_read(buf):
    a(f"s_add_u32 {s(S_TX)}, {s(S_T0)}, {s(S_IX)}")
    a(f"s_and_b32 {s(S_TX)}, {s(S_TX)}, 15")
    a(f"s_lshl_b32 {s(S_TX)}, {s(S_TX)}, 6")
    a(f"s_add_u32 {s(S_IX)}, {s(S_IX)}, 1")
    a(f"v_xor_b32 v10, {s(S_TX)}, v9")
    a(f"ds_read_b128 {v(XF+buf*8,4)}, v10")
    a(f"ds_read_b128 {v(XF+buf*8+4,4)}, v10 offset:16384")

def perms(slot, q, tb):
    out = []
    for half, sel in ((0, S_SELLO), (1, S_SELHI)):
        for m in range(4):
            out.append(f"v_perm_b32 {v(TMPF+tb*8+half*4+m)}, {v(raw(slot,2*m+1)+q)}, {v(raw(slot,2*m)+q)}, {s(sel)}")
    return out

def gemm_compute(slot, xb, first):
    p = perms(slot, 0, 0)
    for x in p: a(x)
    for q in range(4):
        nxt = perms(slot, q + 1, (q + 1) & 1) if q < 3 else []
        tb = q & 1
        k = 0
        for half in range(2):
            for u in range(2):
                jp = 2 * q + half
                c = '0' if first else v(acc(jp, u), 4)
                a(f"v_mfma_f32_16x16x32_bf16 {v(acc(jp,u),4)}, {v(TMPF+tb*8+half*4,4)}, {v(XF+xb*8+u*4,4)}, {c}")
                for x in nxt[k:k+2]: a(x)
                k += 2

def gemm_loop(tag, loads, bar_at_12):
    for i in range(64): a(f"v_mov_b32 {v(ACC+i)}, 0")
    a(f"s_mov_b32 {s(S_IT)}, 0")
    a.label(f"L_{tag}_loop")
    m0 = a.mark()
    for st in range(4):
        loads((st + 3) & 3)
        if bar_at_12 and st == 0:
            a(f"s_cmp_eq_u32 {s(S_IT)}, 3")
            a(f"s_cbranch_scc0 L_{tag}_nobar")
            a("s_barrier")
            a.label(f"L_{tag}_nobar")
        xf_read((st + 1) & 1)
        a("s_waitcnt vmcnt(24) lgkmcnt(2)")
        gemm_compute(st, st & 1, False)
    a(f"s_add_u32 {s(S_IT)}, {s(S_IT)}, 1")
    a(f"s_cmp_lt_u32 {s(S_IT)}, 4")
    a(f"s_cbranch_scc1 L_{tag}_loop")
    global nhaz
    nhaz += a.check(m0, None, tag, twice=True)

hdr = f"""; Fused Q-projection + sliding-window GQA attention + output projection (partials), then a reduce launch.
; @launch kernel=attn_main_kernel grid=(256,1,1) block=(512,1,1) lds=163840
; @launch kernel=reduce_kernel grid=(256,1,1) block=(256,1,1) lds=0
.amdgcn_target "amdgcn-amd-amdhsa--gfx950"
.text
.globl attn_main_kernel
.p2align 8
.type attn_main_kernel,@function
attn_main_kernel:
"""
a("s_cmp_ge_u32 s2, 256")
a("s_cbranch_scc1 L_end")
a(f"s_load_dwordx4 {s(4,4)}, s[0:1], 0")
a(f"s_load_dwordx4 {s(8,4)}, s[0:1], 16")
a(f"s_load_dwordx4 {s(12,4)}, s[0:1], 32")
a(f"s_load_dwordx4 {s(16,4)}, s[0:1], 48")
a("v_lshrrev_b32 v1, 6, v0")
a("v_and_b32 v0, 63, v0")
a(f"v_readfirstlane_b32 {s(S_W)}, v1")
a(f"s_and_b32 {s(S_HKV)}, s2, 7")
a(f"s_lshr_b32 {s(S_B)}, s2, 3")
a(f"s_mov_b32 {s(S_SELLO)}, 0x05040100")
a(f"s_mov_b32 {s(S_SELHI)}, 0x07060302")
a(f"s_mov_b32 {s(S_BIG)}, 0x40000000")
a(f"s_and_b32 {s(S_T0)}, {s(S_B)}, 15")
a(f"s_mov_b32 {s(S_IL)}, 0")
a(f"s_mov_b32 {s(S_IX)}, 0")
stamp('A'); stamp_idx['B'] = stamp_idx['A']
a(f"s_cmp_ge_u32 {s(S_W)}, 4")
a("s_waitcnt lgkmcnt(0)")
a("s_cbranch_scc1 L_B")

mA = a.mark()
a(f"s_lshl_b32 {s(S_TMP)}, {s(S_HKV)}, 2")
a(f"s_add_u32 {s(S_TMP)}, {s(S_TMP)}, {s(S_W)}")
a(f"s_lshl_b32 {s(S_TMP)}, {s(S_TMP)}, 8")
a(f"s_add_u32 {s(SRD_A)}, {s(S_WQ)}, {s(S_TMP)}")
a(f"s_addc_u32 {s(SRD_A+1)}, {s(S_WQ+1)}, 0")
a(f"s_sub_u32 {s(SRD_A+2)}, 4194304, {s(S_TMP)}")
a(f"s_mov_b32 {s(SRD_A+3)}, 0x20000")
a("v_and_b32 v11, 15, v0")
a("v_lshrrev_b32 v12, 4, v0")
a("v_lshlrev_b32 v1, 16, v12")
a("v_lshl_add_u32 v1, v11, 4, v1")
for j in range(1, 8):
    a(f"v_add_u32 {v(1+j)}, {j*8192}, v1")
for sl in range(3): loads_wq(sl)
a("v_xor_b32 v9, v11, v12")
a("v_lshlrev_b32 v9, 4, v9")
a("v_lshl_add_u32 v9, v11, 10, v9")
a(f"v_add_u32 v9, {XREG}, v9")
a("s_barrier")
stamp('A')
xf_read(0)
gemm_loop('q', loads_wq, True)
stamp('A')
mq = a.mark()
a("s_waitcnt vmcnt(0)")
a(f"s_mov_b32 {s(S_C)}, {hex(f2u(CSCALE))}")
a(f"s_mov_b32 {s(S_THR)}, {hex(f2u(THRESH))}")
KADDR, KFR, NEGM, SB, QF, PREG = 8, 16, 48, 64, 96, 128
a("v_and_b32 v1, 31, v0")
a("v_lshrrev_b32 v2, 5, v0")
a("v_lshlrev_b32 v2, 3, v2")
a("v_and_b32 v3, 15, v0")
a("v_xor_b32 v2, v2, v3")
a("v_lshlrev_b32 v2, 4, v2")
a("v_lshl_add_u32 v2, v1, 8, v2")
a("v_mov_b32 v7, v0")
for z in range(8):
    a(f"v_xor_b32 {v(KADDR+z)}, {z*16}, v2")
for i in range(64):
    a(f"v_mul_f32 {v(ACC+i)}, {s(S_C)}, {v(ACC+i)}")
for u in range(2):
    for r in range(4):
        for i in range(4):
            a(f"v_cvt_pk_bf16_f32 {v(QF+(u*4+r)*4+i)}, {v(acc(2*i,u)+r)}, {v(acc(2*i+1,u)+r)}")
a("s_nop 1")
for r in range(4):
    for i in range(4):
        a(f"v_permlane16_swap_b32 {v(QF+r*4+i)}, {v(QF+(4+r)*4+i)}")
nhaz += a.check(mq - 40, None, 'qconv')

def kread(n, z):
    off = (n & 7) * 8192
    return f"ds_read_b128 {v(KFR+z*4,4)}, {v(KADDR+z)} offset:{off}"
def smfma(n, z, cinit):
    sb = SB + (n & 1) * 16
    c = cinit if z == 0 else v(sb, 16)
    return f"v_mfma_f32_32x32x16_bf16 {v(sb,16)}, {v(KFR+z*4,4)}, {v(QF+z*4,4)}, {c}"

ms = a.mark()
a("s_barrier")
stamp('A')
for z in range(8): a(kread(0, z))
for z in range(8):
    a(f"s_waitcnt lgkmcnt(7)")
    a(smfma(0, z, '0'))
    a(kread(1, z))
a("s_nop 7"); a("s_nop 3")
def max16(sb, dst):
    out = [f"v_max3_f32 {v(dst)}, {v(sb)}, {v(sb+1)}, {v(sb+2)}"]
    for k in range(3, 15, 2):
        out.append(f"v_max3_f32 {v(dst)}, {v(dst)}, {v(sb+k)}, {v(sb+k+1)}")
    out.append(f"v_max_f32 {v(dst)}, {v(dst)}, {v(sb+15)}")
    return out
for x in max16(SB, 0): a(x)
a("v_mov_b32 v1, v0")
a("s_nop 1")
a("v_permlane32_swap_b32 v0, v1")
a("v_max_f32 v0, v0, v1")
a("v_ceil_f32 v0, v0")
for i in range(16): a(f"v_sub_f32 {v(SB+i)}, {v(SB+i)}, v0")
a("v_sub_f32 v1, 0, v0")
for i in range(16): a(f"v_mov_b32 {v(NEGM+i)}, v1")
a("s_nop 1")

for n in range(16):
    sb = SB + (n & 1) * 16
    if n % 2 == 0 and (n + 2) // 2 <= 7:
        a("s_barrier")
    if n == 6:
        pass
    mx = max16(sb, 0)
    ex = [f"v_exp_f32 {v(sb+i)}, {v(sb+i)}" for i in range(16)]
    cv = [f"v_cvt_pk_bf16_f32 {v(PREG+8*n+i)}, {v(sb+2*i)}, {v(sb+2*i+1)}" for i in range(8)]
    chk = [f"v_cmp_lt_f32 vcc, {s(S_THR)}, v0", f"s_cbranch_vccnz L_rare_{n}", f"L_back_{n}:"]
    fill = [mx[0:3], mx[3:6], mx[6:8] + chk, ex[0:3], ex[3:6], ex[6:9], ex[9:12], ex[12:16] + cv]
    for z in range(8):
        if n + 1 <= 15:
            if n + 2 <= 15: a("s_waitcnt lgkmcnt(7)")
            else: a(f"s_waitcnt lgkmcnt({7-z})")
            a(smfma(n + 1, z, v(NEGM, 16)))
            if n + 2 <= 15:
                if n + 2 == 8:
                    a(f"v_add_u32 {v(KADDR+z)}, 0x10000, {v(KADDR+z)}")
                a(kread(n + 2, z))
        for x in fill[z]: a(x)
stamp('A')
nhaz += a.check(ms, None, 'sphase')

OACC, VFR, VADDR, LACC = 64, 16, 8, 12
mp = a.mark()
a("v_lshrrev_b32 v1, 5, v7")
a("v_bfe_u32 v2, v7, 2, 2")
a("v_lshl_add_u32 v3, v1, 2, v2")
a("v_lshlrev_b32 v3, 8, v3")
a("v_bfe_u32 v4, v7, 4, 1")
a("v_lshl_add_u32 v3, v4, 5, v3")
a("v_and_b32 v4, 3, v7")
a("v_lshl_add_u32 v3, v4, 3, v3")
a(f"v_add_u32 v3, {XREG}, v3")
for dt in range(4):
    a(f"v_xor_b32 v4, {dt}, v2")
    a(f"v_lshl_add_u32 {v(VADDR+dt)}, v4, 6, v3")
for i in range(4): a(f"v_mov_b32 {v(LACC+i)}, 0")
a("v_mov_b32 v0, 0x3f803f80")
for i in range(64): a(f"v_mov_b32 {v(OACC+i)}, 0")
def vslot(c):
    if c < 2: return 0, c * 16384
    if c < 6: return 1, (c - 2) * 16384
    return 2, (c - 6) * 16384
def vread(m):
    c, ks, dt = m >> 4, (m >> 2) & 3, m & 3
    cls, imm = vslot(c)
    f = VFR + (m & 7) * 4
    off = imm + ks * 4096
    return [f"ds_read_b64_tr_b16 {v(f,2)}, {v(VADDR+dt)} offset:{off}",
            f"ds_read_b64_tr_b16 {v(f+2,2)}, {v(VADDR+dt)} offset:{off+2048}"]
def vrebase(m):
    c = m >> 4
    if (m & 15) < 4:
        dt = m & 3
        if c == 2: return [f"v_subrev_u32 {v(VADDR+dt)}, {XREG}, {v(VADDR+dt)}"]
        if c == 6: return [f"v_add_u32 {v(VADDR+dt)}, 0x10000, {v(VADDR+dt)}"]
    return []
LOOK = 6
a("s_barrier")
stamp('A')
for m in range(LOOK):
    for x in vread(m): a(x)
for m in range(128):
    c, ks, dt = m >> 4, (m >> 2) & 3, m & 3
    nm = m + LOOK
    rem = min(127, m + LOOK - 1) - m
    a(f"s_waitcnt lgkmcnt({2*rem})")
    f = VFR + (m & 7) * 4
    a(f"v_mfma_f32_32x32x16_bf16 {v(OACC+dt*16,16)}, {v(f,4)}, {v(PREG+16*c+4*ks,4)}, {v(OACC+dt*16,16)}")
    if nm < 128:
        if (nm & 15) == 0: a("s_barrier")
        for x in vrebase(nm): a(x)
        for x in vread(nm): a(x)
    a(f"v_dot2_f32_bf16 {v(LACC+dt)}, {v(PREG+16*c+4*ks+dt)}, v0, {v(LACC+dt)}")
stamp('A')
a(f"v_add_f32 {v(LACC)}, {v(LACC)}, {v(LACC+1)}")
a(f"v_add_f32 {v(LACC+2)}, {v(LACC+2)}, {v(LACC+3)}")
a(f"v_add_f32 v1, {v(LACC)}, {v(LACC+2)}")
a("v_mov_b32 v2, v1")
a("v_and_b32 v3, 31, v7")
a("v_lshlrev_b32 v3, 10, v3")
a("v_permlane32_swap_b32 v1, v2")
a("v_add_f32 v1, v1, v2")
a("v_rcp_f32 v1, v1")
a("v_and_b32 v4, 15, v7")
a("v_lshl_add_u32 v3, v4, 4, v3")
a("v_lshrrev_b32 v4, 5, v7")
a("v_lshl_add_u32 v3, v4, 3, v3")
a(f"s_lshl_b32 {s(S_TMP)}, {s(S_W)}, 8")
a(f"s_add_u32 {s(S_TMP)}, {s(S_TMP)}, {OREG}")
a(f"v_add_u32 v3, {s(S_TMP)}, v3")
a("s_nop 4")
for dt in range(4):
    for g in range(4):
        b0 = OACC + dt * 16 + g * 4
        for e in range(4): a(f"v_mul_f32 {v(b0+e)}, {v(b0+e)}, v1")
        t = 16 + ((dt * 4 + g) & 3) * 2
        a(f"v_cvt_pk_bf16_f32 {v(t)}, {v(b0)}, {v(b0+1)}")
        a(f"v_cvt_pk_bf16_f32 {v(t+1)}, {v(b0+2)}, {v(b0+3)}")
        a(f"v_xor_b32 v5, {(4*dt+g)*16}, v3")
        a(f"ds_write_b64 v5, {v(t,2)}")
a("s_waitcnt lgkmcnt(0)")
a("s_barrier")
stamp('A')
nhaz += a.check(mp, None, 'pv')
stamps_flush('A', 0)
a("s_endpgm")

for n in range(16):
    a.label(f"L_rare_{n}")
    a(f"s_getpc_b64 {s(S_CALL,2)}")
    a(f"s_add_u32 {s(S_CALL)}, {s(S_CALL)}, L_rescale-.-4" if False else f"s_add_u32 {s(S_CALL)}, {s(S_CALL)}, L_rescale-L_rarepc_{n}")
    a.lines.insert(len(a.lines)-1, f"L_rarepc_{n}:")
    a(f"s_addc_u32 {s(S_CALL+1)}, {s(S_CALL+1)}, 0")
    a(f"s_swappc_b64 {s(S_RET,2)}, {s(S_CALL,2)}")
    a(f"s_branch L_back_{n}")
a.label("L_rescale")
mr = a.mark()
a("s_nop 7"); a("s_nop 7")
a("v_mov_b32 v1, v0")
a("s_nop 1")
a("v_permlane32_swap_b32 v0, v1")
a("v_max_f32 v0, v0, v1")
a("v_ceil_f32 v0, v0")
a("v_max_f32 v0, 0, v0")
for i in range(32): a(f"v_sub_f32 {v(SB+i)}, {v(SB+i)}, v0")
for i in range(16): a(f"v_sub_f32 {v(NEGM+i)}, {v(NEGM+i)}, v0")
a("v_sub_f32 v1, 0, v0")
a("v_exp_f32 v1, v1")
a("s_nop 0")
for i in range(128):
    a(f"v_lshlrev_b32 v2, 16, {v(PREG+i)}")
    a(f"v_and_b32 v3, 0xffff0000, {v(PREG+i)}")
    a("v_mul_f32 v2, v2, v1")
    a("v_mul_f32 v3, v3, v1")
    a(f"v_cvt_pk_bf16_f32 {v(PREG+i)}, v2, v3")
a("s_nop 1")
a(f"s_setpc_b64 {s(S_RET,2)}")
nhaz += a.check(mr, None, 'rescale')

a.label("L_B")
mB = a.mark()
a(f"s_sub_u32 {s(S_J)}, {s(S_W)}, 4")
a(f"s_lshl_b32 {s(S_TMP)}, {s(S_B)}, 15")
a(f"s_add_u32 {s(SRD_A)}, {s(S_X)}, {s(S_TMP)}")
a(f"s_addc_u32 {s(SRD_A+1)}, {s(S_X+1)}, 0")
a(f"s_mov_b32 {s(SRD_A+2)}, 32768")
a(f"s_mov_b32 {s(SRD_A+3)}, 0x20000")
a("v_lshlrev_b32 v1, 4, v0")
for m in range(8):
    a(f"s_add_u32 {s(S_TMP)}, {s(S_J)}, {4*m}")
    a(f"s_and_b32 {s(S_TMP+1)}, {s(S_TMP)}, 15")
    a(f"s_lshl_b32 {s(S_TMP+1)}, {s(S_TMP+1)}, 4")
    a(f"s_lshl_b32 {s(S_TMP)}, {s(S_TMP)}, 10")
    a(f"s_add_u32 m0, {s(S_TMP)}, {XREG}")
    a(f"v_xor_b32 v2, {s(S_TMP+1)}, v1")
    a(f"buffer_load_dwordx4 v2, {s(SRD_A,4)}, {s(S_TMP)} offen lds")
a(f"s_lshl_b32 {s(S_TMP)}, {s(S_B)}, 22")
a(f"s_lshl_b32 {s(S_TMP+1)}, {s(S_HKV)}, 19")
a(f"s_add_u32 {s(S_TMP)}, {s(S_TMP)}, {s(S_TMP+1)}")
a(f"s_add_u32 {s(S_TMP)}, {s(S_TMP)}, 393216")
for srd, ptr in ((SRD_K, S_K), (SRD_V, S_V)):
    a(f"s_add_u32 {s(srd)}, {s(ptr)}, {s(S_TMP)}")
    a(f"s_addc_u32 {s(srd+1)}, {s(ptr+1)}, 0")
    a(f"s_mov_b32 {s(srd+2)}, 131072")
    a(f"s_mov_b32 {s(srd+3)}, 0x20000")
a(f"s_add_u32 {s(SRD_WO)}, {s(S_WO)}, {s(S_TMP+1)}")
a(f"s_addc_u32 {s(SRD_WO+1)}, {s(S_WO+1)}, 0")
a(f"s_mov_b32 {s(SRD_WO+2)}, 524288")
a(f"s_mov_b32 {s(SRD_WO+3)}, 0x20000")
a(f"s_lshl_b32 {s(S_TMP)}, s2, 15")
a(f"s_add_u32 {s(SRD_WS)}, {s(S_WS)}, {s(S_TMP)}")
a(f"s_addc_u32 {s(SRD_WS+1)}, {s(S_WS+1)}, 0")
a(f"s_mov_b32 {s(SRD_WS+2)}, 32768")
a(f"s_mov_b32 {s(SRD_WS+3)}, 0x20000")
a(f"s_lshl_b32 {s(S_TMP)}, {s(S_B)}, 7")
a(f"s_lshl_b32 {s(S_TMP+1)}, {s(S_J)}, 5")
a(f"s_add_u32 {s(S_TMP)}, {s(S_TMP)}, {s(S_TMP+1)}")
a("v_lshrrev_b32 v2, 1, v0")
a(f"v_add_u32 v2, {s(S_TMP)}, v2")
a("v_lshlrev_b32 v2, 7, v2")
a(f"buffer_load_dword v250, v2, {s(SRD_WO,4)}, 0 offen")
VK, VV = 5, 6
a("v_lshrrev_b32 v11, 4, v0")
a("v_and_b32 v12, 15, v0")
a(f"s_lshl_b32 {s(S_TMP)}, {s(S_J)}, 2")
a(f"v_add_u32 v13, {s(S_TMP)}, v11")
a("v_xor_b32 v13, v13, v12")
a("v_lshlrev_b32 v13, 4, v13")
a(f"s_lshl_b32 {s(S_TMP+1)}, {s(S_J)}, 10")
a("v_lshl_add_u32 v13, v11, 8, v13")
a(f"v_add_u32 {v(VK)}, {s(S_TMP+1)}, v13")
a("v_lshlrev_b32 v13, 2, v11")
a("v_xor_b32 v13, v13, v12")
a("v_lshlrev_b32 v13, 4, v13")
a("v_lshl_add_u32 v13, v11, 8, v13")
a(f"v_add_u32 {v(VV)}, {s(S_TMP+1)}, v13")
a("v_lshlrev_b32 v3, 13, v11")
a("v_lshl_add_u32 v3, v12, 4, v3")
a(f"s_lshl_b32 {s(S_TMP)}, {s(S_J)}, 8")
a(f"v_add_u32 v3, {s(S_TMP)}, v3")
a("v_add_u32 v4, 4096, v3")
a("v_xor_b32 v9, v12, v11")
a("v_lshlrev_b32 v9, 4, v9")
a("v_lshl_add_u32 v9, v12, 10, v9")
a(f"v_add_u32 v9, {OREG}, v9")
S_JK = S_TMP + 4
a(f"s_lshl_b32 {s(S_JK)}, {s(S_J)}, 10")
a("s_waitcnt vmcnt(1)")
a("s_barrier")
stamp('B')
a("s_barrier")
stamp('B')
def slot_of(idx):
    if idx < 8: return idx * 16384
    c = idx - 8
    return XREG + c * 16384 if c < 2 else (c - 2) * 16384
def dma_item(idx):
    srd, vo = (SRD_K, VK) if idx < 8 else (SRD_V, VV)
    c = idx & 7
    for m in range(4):
        a(f"s_add_u32 m0, {s(S_JK)}, {slot_of(idx) + m*4096}")
        a(f"s_mov_b32 {s(S_TMP)}, {c*16384 + m*4096}")
        a(f"buffer_load_dwordx4 {v(vo)}, {s(srd,4)}, {s(S_TMP)} offen nt lds")
for i in range(3): dma_item(i)
for step in range(16):
    extra = max(0, step - 13) * 8
    younger = min(15, step + 2) - step
    a(f"s_waitcnt vmcnt({younger*4 + extra})")
    a("s_barrier")
    if step in (0, 7, 8, 15): stamp('B')
    if step + 3 <= 15: dma_item(step + 3)
    else: loads_wo(step - 13)
a("s_barrier")
stamp('B')
xf_read(0)
gemm_loop('o', loads_wo, False)
stamp('B')
me = a.mark()
a("s_waitcnt vmcnt(0)")
a("s_nop 7")
a("v_lshlrev_b32 v1, 4, v0")
a(f"s_lshl_b32 {s(S_TMP)}, {s(S_J)}, 13")
for u in range(2):
    for r in range(4):
        t = 80 + (u * 4 + r) * 4
        for i in range(4):
            a(f"v_cvt_pk_bf16_f32 {v(t+i)}, {v(acc(2*i,u)+r)}, {v(acc(2*i+1,u)+r)}")
        a(f"buffer_store_dwordx4 {v(t,4)}, v1, {s(SRD_WS,4)}, {s(S_TMP)} offen offset:{r*1024}")
    if u == 0: a(f"s_add_u32 {s(S_TMP)}, {s(S_TMP)}, 4096")
stamp('B')
nhaz += a.check(me - 30, None, 'oepi')
nhaz += a.check(mB, me, 'B')
nhaz += a.check(mA, mq, 'A0')
a("s_waitcnt vmcnt(0)")
stamp('B')
stamps_flush('B', 1)
a.label("L_end")
a("s_endpgm")

a(".globl reduce_kernel")
a(".p2align 8")
a(".type reduce_kernel,@function")
a.label("reduce_kernel")
mr = a.mark()
a("s_cmp_ge_u32 s2, 256")
a("s_cbranch_scc1 L_rend")
a("s_load_dwordx2 s[4:5], s[0:1], 40")
a("s_load_dwordx2 s[6:7], s[0:1], 56")
a("v_lshrrev_b32 v1, 6, v0")
a("v_and_b32 v0, 63, v0")
a("s_lshr_b32 s8, s2, 3")
a("s_and_b32 s9, s2, 7")
a("s_lshl_b32 s10, s9, 12")
a("v_lshlrev_b32 v2, 10, v1")
a("v_lshl_add_u32 v2, v0, 4, v2")
a("v_add_u32 v2, s10, v2")
a("s_lshl_b32 s11, s8, 18")
a("s_waitcnt lgkmcnt(0)")
a("s_add_u32 s12, s6, s11")
a("s_addc_u32 s13, s7, 0")
a("s_mov_b32 s14, 262144")
a("s_mov_b32 s15, 0x20000")
a("s_mov_b32 s16, s4")
a("s_mov_b32 s17, s5")
a("s_mov_b32 s18, 1048576")
a("s_mov_b32 s19, 0x20000")
for h in range(8):
    a(f"s_mov_b32 s20, {h*32768}")
    a(f"buffer_load_dwordx4 {v(8+h*4,4)}, v2, s[12:15], s20 offen")
a("v_and_b32 v3, 15, v0")
a("v_lshrrev_b32 v4, 4, v0")
a("s_and_b32 s21, s9, 1")
a("s_lshr_b32 s22, s9, 1")
a("s_lshl_b32 s23, s8, 5")
a("s_lshl_b32 s21, s21, 4")
a("s_add_u32 s23, s23, s21")
a("s_lshl_b32 s23, s23, 10")
a("s_lshl_b32 s22, s22, 8")
a("s_add_u32 s23, s23, s22")
a("v_lshlrev_b32 v3, 10, v3")
a("v_lshl_add_u32 v3, v4, 6, v3")
a("v_lshl_add_u32 v3, v1, 4, v3")
a("v_add_u32 v3, s23, v3")
for h in range(8):
    a(f"s_waitcnt vmcnt({7-h})")
    for i in range(4):
        if h == 0:
            a(f"v_lshlrev_b32 {v(40+2*i)}, 16, {v(8+i)}")
            a(f"v_and_b32 {v(41+2*i)}, 0xffff0000, {v(8+i)}")
        else:
            a(f"v_lshlrev_b32 v5, 16, {v(8+h*4+i)}")
            a(f"v_and_b32 v6, 0xffff0000, {v(8+h*4+i)}")
            a(f"v_add_f32 {v(40+2*i)}, {v(40+2*i)}, v5")
            a(f"v_add_f32 {v(41+2*i)}, {v(41+2*i)}, v6")
for i in range(4):
    a(f"v_cvt_pk_bf16_f32 {v(48+i)}, {v(40+2*i)}, {v(41+2*i)}")
a("buffer_store_dwordx4 v[48:51], v3, s[16:19], 0 offen")
a.label("L_rend")
a("s_endpgm")
nhaz += a.check(mr, None, 'reduce')

tail = """
.section .rodata,"a"
.p2align 6
.amdhsa_kernel attn_main_kernel
  .amdhsa_next_free_vgpr 256
  .amdhsa_next_free_sgpr 102
  .amdhsa_accum_offset 256
  .amdhsa_group_segment_fixed_size 0
  .amdhsa_kernarg_size 64
  .amdhsa_user_sgpr_count 2
  .amdhsa_user_sgpr_kernarg_segment_ptr 1
  .amdhsa_system_sgpr_workgroup_id_x 1
.end_amdhsa_kernel
.p2align 6
.amdhsa_kernel reduce_kernel
  .amdhsa_next_free_vgpr 56
  .amdhsa_next_free_sgpr 32
  .amdhsa_accum_offset 56
  .amdhsa_group_segment_fixed_size 0
  .amdhsa_kernarg_size 64
  .amdhsa_user_sgpr_count 2
  .amdhsa_user_sgpr_kernarg_segment_ptr 1
  .amdhsa_system_sgpr_workgroup_id_x 1
.end_amdhsa_kernel
"""
out = sys.argv[1] if len(sys.argv) > 1 and not sys.argv[1].startswith('--') else 'cdna_kernels/' + NAME + '.s'
open(out, 'w').write(hdr + a.text() + tail)
print("written", out, "hazards:", nhaz)
```
